```python
import torch

def _softmax(x, axis=-1):
    return torch.softmax(x, dim=axis)
def _gelu(x):
    return torch.nn.functional.gelu(x, approximate="tanh")
def _silu(x):
    return torch.nn.functional.silu(x)
def _sigmoid(x):
    return torch.sigmoid(x)
def _layernorm(x, axis=-1, eps=1e-5):
    m = x.mean(dim=axis, keepdim=True)
    v = x.var(dim=axis, keepdim=True, unbiased=False)
    return (x - m) / torch.sqrt(v + eps)
def _scatter_add(tgt, idx, src, axis=0):
    return tgt.clone().index_add_(axis, idx, src)
def _segment_sum(src, seg, n):
    out = torch.zeros((n,) + src.shape[1:], dtype=src.dtype)
    return out.index_add_(0, seg, src)
def _pad(x, pw):
    flat = tuple(v for pair in reversed(pw) for v in pair)
    return torch.nn.functional.pad(x, flat)

kernel_name = 'gather_scatter__edge_featured_mpnn_mpnn__graph'

def setup_inputs():

    _w = (lambda a: (lambda t: t.to(torch.bfloat16) if t.is_floating_point() else t)(torch.as_tensor(a)))
    N, deg, D, De = 12500, 32, 128, max(4, 1)
    E = N * deg
    H = 2 * D
    return {
        "x": _w((lambda *s: torch.randn(*s, dtype=torch.bfloat16) * 0.05)(N, D)),
        "e_attr": _w((lambda *s: torch.randn(*s, dtype=torch.bfloat16) * 1.6)(E, De)),
        "src": _w((lambda lo, hi, *s: torch.randint(lo, hi, s))(0, N, E).to(torch.int64)),
        "dst": _w((lambda lo, hi, *s: torch.randint(lo, hi, s))(0, N, E).to(torch.int64)),
        "w1": _w((lambda *s: torch.randn(*s, dtype=torch.bfloat16) * 1.6)(2 * D + De, H) * (1.0 / (2 * D + De) ** 0.5)),
        "b1": _w((lambda *s: torch.randn(*s, dtype=torch.bfloat16) * 3.2)(H) * 0.01),
        "w2": _w((lambda *s: torch.randn(*s, dtype=torch.bfloat16) * 0.05)(H, D) * (1.0 / H ** 0.5)),
        "b2": _w((lambda *s: torch.randn(*s, dtype=torch.bfloat16) * 0.1)(D) * 0.01),
    }

def reference(x, e_attr, src, dst, w1, b1, w2, b2):
    N, D = x.shape
    h_src = x[src]
    h_dst = x[dst]
    m_in = torch.concatenate([h_src, h_dst, e_attr], axis=-1)
    h = _silu(m_in @ w1 + b1)
    msg = h @ w2 + b2
    return _segment_sum(msg, dst, N)
```

```python
import sys, os, subprocess, struct, ctypes
import numpy as np
sys.path.insert(0, "cdna_kernels")

HDR = """.amdgcn_target "amdgcn-amd-amdhsa--gfx950"
.text
"""

def kernel_text(name, body, iters, pre="", vgpr=128, accum=None, post=""):
    accum = accum or vgpr
    return f"""
.globl {name}
.p2align 8
.type {name},@function
{name}:
    s_load_dwordx4 s[4:7], s[0:1], 0
    v_lshrrev_b32 v1, 6, v0
    s_nop 0
    v_readfirstlane_b32 s20, v1
    v_and_b32 v2, 63, v0
    v_cvt_f32_u32 v3, v2
    v_mul_f32 v3, 0x3c23d70a, v3     ; lane*0.01
{pre}
    s_waitcnt lgkmcnt(0)
    s_mov_b32 s8, s4
    s_mov_b32 s9, s5
    s_mov_b32 s10, 0x1000000
    s_mov_b32 s11, 0x00020000
    s_mov_b32 s12, s6
    s_mov_b32 s13, s7
    s_mov_b32 s14, 0x4000000
    s_mov_b32 s15, 0x00020000
    s_mov_b32 s21, {iters}
    s_barrier
    s_memtime s[16:17]
    s_waitcnt lgkmcnt(0)
.p2align 6
L_{name}_loop:
{body}
    s_sub_u32 s21, s21, 1
    s_cmp_lg_u32 s21, 0
    s_cbranch_scc1 L_{name}_loop
    s_nop 15
    s_nop 15
    s_memtime s[18:19]
    s_waitcnt vmcnt(0) lgkmcnt(0)
{post}
    s_sub_u32 s18, s18, s16
    s_subb_u32 s19, s19, s17
    s_lshl_b32 s22, s2, 4
    s_add_u32 s22, s22, s20
    s_lshl_b32 s22, s22, 2
    v_mov_b32 v4, s18
    v_mov_b32 v5, s22
    v_cmp_eq_u32 vcc, 0, v2
    s_and_saveexec_b64 s[24:25], vcc
    buffer_store_dword v4, v5, s[8:11], 0 offen
    s_waitcnt vmcnt(0)
    s_endpgm
""", f"""
.amdhsa_kernel {name}
  .amdhsa_next_free_vgpr {vgpr}
  .amdhsa_next_free_sgpr 96
  .amdhsa_accum_offset {accum}
  .amdhsa_group_segment_fixed_size 0
  .amdhsa_kernarg_size 16
  .amdhsa_user_sgpr_count 2
  .amdhsa_user_sgpr_kernarg_segment_ptr 1
  .amdhsa_system_sgpr_workgroup_id_x 1
.end_amdhsa_kernel
""", f"""  - .name: {name}
    .symbol: {name}.kd
    .kernarg_segment_size: 16
    .kernarg_segment_align: 8
    .group_segment_fixed_size: 0
    .private_segment_fixed_size: 0
    .wavefront_size: 64
    .sgpr_count: 96
    .vgpr_count: {vgpr}
    .max_flat_workgroup_size: 1024
    .args:
      - {{.name: kernargs, .size: 16, .offset: 0, .value_kind: by_value}}
"""

def build(kernels, out):
    t, kd, md = [], [], []
    for name, body, iters, kw in kernels:
        a, b, c = kernel_text(name, body, iters, **kw)
        t.append(a); kd.append(b); md.append(c)
    s = HDR + "".join(t) + '\n.section .rodata,"a"\n.p2align 6\n' + "\n.p2align 6\n".join(kd)
    s += "\n.amdgpu_metadata\n---\namdhsa.version: [1, 2]\namdhsa.kernels:\n" + "".join(md) + "...\n.end_amdgpu_metadata\n"
    open(out + ".s", "w").write(s)
    r = subprocess.run(["clang", "-x", "assembler", "-target", "amdgcn-amd-amdhsa", "-mcpu=gfx950", out + ".s", "-o", out + ".co"], capture_output=True, text=True)
    if r.returncode:
        print(r.stderr[:1500]); sys.exit(1)

def run(co, names, configs, ninstr, data=None):
    import cdna_launch as cl
    k0 = cl.AsmKernel(co, names[0], check=False)
    out = cl.DeviceBuffer(1 << 24)
    if data is None:
        data = np.zeros(1 << 26, dtype=np.uint8)
    dbuf = cl.DeviceBuffer.from_numpy(data)
    ka = struct.pack("<2Q", out.ptr, dbuf.ptr)
    for name in names:
        f = k0.function(name)
        res = []
        for grid, block in configs:
            for rep in range(3):
                cl._check(cl._hip.hipMemset(ctypes.c_void_p(out.ptr), 0, 1 << 20))
                cl._launch_function(f, (grid, 1, 1), (block, 1, 1), ka, 0, None)
                cl._check(cl._hip.hipDeviceSynchronize())
            o = out.to_numpy(np.uint32, (1 << 18,))
            nw = block // 64
            v = o[: grid * 16].reshape(grid, 16)[:, :nw].astype(np.float64)
            wps = max(1, (grid * nw) // 1024)
            res.append(f"w{wps}: {np.median(v.max(axis=1))/ninstr[name]/wps:.2f}")
        print(f"{name:28s} " + " | ".join(res), flush=True)
```

```python
import sys
from mb import *
from mb2 import run2
K = []
NI = {}
pre = "\n".join(f"    v_add_f32 v{10+i}, {0.5 if i%2 else 1.0}, v3" for i in range(100))
def add(name, A, iters=200, rep=16, **kw):
    A = A * rep
    body = "\n".join("    " + l for l in A)
    K.append((name, body.replace("@", name), iters, dict(pre=pre, **kw))); NI[name] = iters * rep
def pk(d,a,b,c): return f"v_pk_fma_f32 v[{d}:{d+1}], v[{a}:{a+1}], v[{b}:{b+1}], v[{c}:{c+1}]"
add("pk_dep1_x16", [pk(80,80,10,80)]*16)
add("pk_dep2_x16", [pk(80,80,10,80), pk(82,82,10,82)]*8)
add("pk_dep3_x18", [pk(80,80,10,80), pk(82,82,10,82), pk(84,84,10,84)]*6)
add("fma_dep1_x16", ["v_fma_f32 v80, v80, v10, v80"]*16)
add("exp_dep1_x16", ["v_exp_f32 v80, v80"]*16)
add("exp2_pk_x8", ["v_exp_f32 v80, v10", "v_exp_f32 v81, v11", "s_nop 0", pk(82,80,12,82)]*8)
MF = "v_mfma_f32_32x32x16_bf16 v[96:111], v[10:13], v[14:17], v[96:111]"
MF2 = "v_mfma_f32_32x32x16_bf16 v[112:127], v[10:13], v[14:17], v[112:127]"
E = [f"v_exp_f32 v{60+i}, v{20+i}" for i in range(16)]
P = [pk(40+2*i, 20+2*i, 22+2*i, 40+2*i) for i in range(8)]
L = [f"v_lshlrev_b64 v[{40+2*i}:{41+2*i}], 16, v[{20+2*i}:{21+2*i}]" for i in range(8)]
for ne in (0,1,2,3,4,5,6):
    add(f"mf_e{ne}_p8", [MF] + E[:ne] + P)
for ne in (0,2,4):
    add(f"mf_e{ne}_l8", [MF] + E[:ne] + L)
for (a,b) in ((3,5),(4,4),(3,4),(2,5),(3,6),(0,8),(0,9)):
    add(f"mf_e{a}_mf_e{b}_p8", [MF] + E[:a] + [MF2] + E[a:a+b] + P)
add("e4_p6_salu0", E[:4] + P[:6])
add("e4_p6_salu2", E[:4] + ["s_bitcmp1_b32 s30, 3", "s_cbranch_scc1 L_@_loop"] + P[:6], pre2=None) if False else None
add("e4_p6_br", E[:4] + ["s_bitcmp1_b32 s23, 3", "s_cbranch_scc1 L_@_loop"] + P[:6])
add("e4_p6_brmid", E[:2] + ["s_bitcmp1_b32 s23, 3"] + E[2:4] + ["s_cbranch_scc1 L_@_loop"] + P[:6])
add("e4_p6_tk", E[:4] + ["s_branch 0"] + P[:6])
add("e4_p6_tk2", E[:4] + ["s_branch 1", "s_nop 0"] + P[:6])
MFK8 = "v_mfma_f32_32x32x8_bf16 v[96:111], v[10:11], v[14:15], v[96:111]"
add("mfk8_e8", [MFK8] + E[:8])
add("mf_e8", [MF] + E[:8])
add("mfk8_only", [MFK8])
add("mf4x4_e8", ["v_mfma_f32_4x4x4_16b_bf16 v[96:99], v[10:11], v[14:15], v[96:99]"] + E[:8])
add("mf2b_e8", ["v_mfma_f32_32x32x4_2b_bf16 v[96:127], v[10:11], v[14:15], v[96:127]"] + E[:8])
add("mf2b_e16", ["v_mfma_f32_32x32x4_2b_bf16 v[96:127], v[10:11], v[14:15], v[96:127]"] + E[:16])
if __name__ == "__main__":
    for i,k in enumerate(K):
        K[i] = (k[0], k[1], k[2], dict(k[3], pre=k[3]['pre'] + "\n    s_mov_b32 s23, 0\n"))
    build(K, "mb3")
    if len(sys.argv) > 1:
        run2("mb3.co", [k[0] for k in K], [(256, 256), (256, 512), (256, 1024)], NI)
```

```python
import sys, struct

NAME = "gather_scatter__edge_featured_mpnn_mpnn__graph"
N = 12500
E = 400000
NPB = 49
NB = 256
NP = 250
EPP = 1600
NGEMM = 196
NPREP = 9
WS_P = 0
WS_ENT = 0x700000
WS_TBL = 0xC00000
WS_WC = 0xD00000
WS_W1BF = 0xD10000
WS_W2F = 0xD20000
WS_END = 0xD30000
NEG_L2E = struct.unpack("<I", struct.pack("<f", -1.4426950408889634))[0]
NEG_LN2 = struct.unpack("<I", struct.pack("<f", -0.6931471805599453))[0]
SROW = 1040
MAXT = 152
L_S = 0
L_REC = 60 * SROW
L_META = L_REC + MAXT * 256
L_CNT = L_META + 864
L_IDX = L_REC + 40960
L_QT = L_IDX + 16384
L_WSUM = L_QT + 32768
L_DEG = L_WSUM + 64
L_FLAG = L_DEG + 256
L_TOTAL = L_FLAG + 256
CAP = 2000
UMAX = 12
CUT = 48

DEBUG_STAMPS = False
OPT = {}


class Asm:
    def __init__(self):
        self.lines = []

    def __call__(self, s):
        for l in s.strip("\n").split("\n"):
            self.lines.append("    " + l.strip())

    def label(self, l):
        self.lines.append(l + ":")

    def raw(self, s):
        self.lines.append(s)

    def text(self):
        return "\n".join(self.lines) + "\n"


import re
_V3 = ("v_pk_", "v_mfma", "v_lshlrev_b64", "v_readlane", "v_perm_b32", "v_add3", "v_lshl_add", "v_lshl_or", "v_add_lshl",
       "v_cvt_pk_bf16", "v_mad_", "v_bfe_", "v_fma_", "v_mul_lo", "v_mul_hi", "v_mbcnt", "v_writelane", "v_and_or", "v_bfi",
       "v_max3", "v_min3", "v_med3", "v_accvgpr")
_INL = {str(i) for i in range(-16, 65)} | {"0.5", "1.0", "2.0", "4.0", "-0.5", "-1.0", "-2.0", "-4.0"}


def isize(line):
    l = line.strip()
    op = l.split()[0]
    if op.startswith(("ds_", "buffer_", "global_", "s_load", "s_memtime", "s_memrealtime")):
        return 8
    if op.startswith(_V3) or op.endswith(("_e64", "_dpp", "_sdwa")):
        return 8
    if op in ("s_waitcnt", "s_nop", "s_barrier", "s_endpgm", "s_setprio") or op.startswith(("s_branch", "s_cbranch")):
        return 4
    args = [x.strip() for x in l[len(op):].split(",")]
    if op.startswith("v_cmp") and args[0] != "vcc":
        return 8
    for x in args[1:] if not op.startswith("s_cmp") and not op.startswith("s_bitcmp") else args:
        if re.fullmatch(r"-?(0x[0-9a-fA-F]+|\d+)", x):
            v = int(x, 0)
            if v >= 0xfffffff0:
                v -= 1 << 32
            if not (-16 <= v <= 64):
                return 8
    return 4


def align8(lines):
    out = []
    off = 0
    for l in lines:
        t = l.strip()
        if t.endswith(":") or t.startswith("."):
            out.append(l)
            if t.startswith(".p2align"):
                off = 0
            continue
        sz = isize(l)
        if sz == 8 and off % 8 == 4:
            k = len(out) - 1
            fixed = False
            while k >= 0:
                tk = out[k].strip()
                if tk.endswith(":"):
                    k -= 1
                    continue
                if tk.startswith(".") or isize(out[k]) == 8:
                    break
                opk = tk.split()[0]
                if opk.startswith("v_") and not opk.startswith(("v_readfirstlane", "v_permlane")):
                    o = off - sum(isize(x) for x in out[k:] if not x.strip().endswith(":"))
                    if o % 8 == 0:
                        out[k] = out[k].replace(opk, opk + "_e64", 1)
                        fixed = True
                        break
                k -= 1
            if not fixed:
                out.append("    s_nop 0")
            off += 4
        out.append(l)
        off += sz
    return out


def vr(b, n=1):
    return f"v{b}" if n == 1 else f"v[{b}:{b+n-1}]"


def ar(b, n=1):
    return f"a{b}" if n == 1 else f"a[{b}:{b+n-1}]"


def sr(b, n=1):
    return f"s{b}" if n == 1 else f"s[{b}:{b+n-1}]"


def srd(a, d, base, size, off=0, stride=0):
    if off:
        a(f"s_add_u32 s{d}, s{base}, {off:#x}")
        a(f"s_addc_u32 s{d+1}, s{base+1}, 0")
    else:
        a(f"s_mov_b32 s{d}, s{base}")
        a(f"s_mov_b32 s{d+1}, s{base+1}")
    if stride:
        a(f"s_and_b32 s{d+1}, s{d+1}, 0xffff")
        a(f"s_or_b32 s{d+1}, s{d+1}, {stride << 16:#x}")
    a(f"s_mov_b32 s{d+2}, {size}")
    a(f"s_mov_b32 s{d+3}, 0x00020000")


STAMP_BASE = 76
def stamp(a, k):
    if DEBUG_STAMPS:
        a(f"s_memtime s[{STAMP_BASE+2*k}:{STAMP_BASE+2*k+1}]")


def stamp_dump(a, n, wsreg, nw, wavereg, off):
    if not DEBUG_STAMPS:
        return
    a(f"s_memrealtime s[{STAMP_BASE+2*n}:{STAMP_BASE+2*n+1}]")
    a("s_waitcnt lgkmcnt(0)")
    srd(a, 56, wsreg, 0x100000, off=off)
    a(f"s_mul_i32 s4, s2, {nw}")
    a(f"s_add_u32 s4, s4, s{wavereg}")
    a("s_lshl_b32 s4, s4, 6")
    a("s_mov_b64 exec, 1")
    a("v_mov_b32 v20, 0")
    for k in range(n + 2):
        a(f"v_mov_b32 v21, s{STAMP_BASE+2*k}")
        a(f"buffer_store_dword v21, v20, s[56:59], s4 offen offset:{4*k}")
    a("s_mov_b64 exec, -1")


def wave_scan(a, v):
    for sh in (1, 2, 4, 8):
        a("s_nop 1")
        a(f"v_add_u32_dpp v{v}, v{v}, v{v} row_shr:{sh} row_mask:0xf bank_mask:0xf bound_ctrl:0")
    a("s_nop 1")
    a(f"v_add_u32_dpp v{v}, v{v}, v{v} row_bcast:15 row_mask:0xa bank_mask:0xf")
    a("s_nop 1")
    a(f"v_add_u32_dpp v{v}, v{v}, v{v} row_bcast:31 row_mask:0xc bank_mask:0xf")


def cp_of_m(a, d, m, t):
    a(f"v_and_b32 v{d}, 3, v{m}")
    a(f"v_lshrrev_b32 v{t}, 3, v{m}")
    a(f"v_lshl_add_u32 v{d}, v{t}, 2, v{d}")
    a(f"v_bfe_u32 v{t}, v{m}, 2, 1")
    a(f"v_lshl_add_u32 v{d}, v{t}, 4, v{d}")


def gen_k1(a):
    a.raw(".p2align 8")
    a.label("k1_kernel")
    a(f"""
    s_cmp_ge_u32 s2, {NGEMM + NP + NPREP}
    s_cbranch_scc1 K1_END
    s_load_dwordx16 s[16:31], s[0:1], 0
    s_load_dwordx2 s[32:33], s[0:1], 80
    v_and_b32 v1, 63, v0
    v_lshrrev_b32 v2, 6, v0
    v_and_b32 v3, 31, v0
    v_readfirstlane_b32 s3, v2
    v_lshrrev_b32 v4, 5, v1
    s_cmp_ge_u32 s2, {NGEMM}
    s_cbranch_scc1 K1_NOTGEMM
    """)
    WR, XR, ACC, AT = 16, 80, 144, 208
    cp_of_m(a, 5, 3, 6)
    a(f"""
    s_lshl_b32 s4, s3, 5
    v_add_u32 v5, s4, v5
    v_lshlrev_b32 v5, 2, v5
    v_lshl_add_u32 v5, v4, 12, v5
    s_lshl_b32 s5, s2, 6
    v_add_u32 v7, s5, v3
    v_lshlrev_b32 v6, 8, v7
    v_lshl_add_u32 v6, v4, 4, v6
    v_lshlrev_b32 v7, 9, v7
    v_lshl_add_u32 v7, v4, 6, v7
    s_lshl_b32 s4, s3, 7
    v_add_u32 v7, s4, v7
    s_mov_b32 s6, 8192
    s_mov_b32 s7, 16384
    s_mov_b32 s8, 0x05040100
    s_mov_b32 s9, 0x07060302
    s_mov_b32 s10, {NEG_L2E:#x}
    s_mov_b32 s11, {NEG_L2E:#x}
    s_waitcnt lgkmcnt(0)
    """)
    srd(a, 36, 24, 260 * 512)
    srd(a, 40, 16, N * 256)
    srd(a, 44, 32, N * 512, off=WS_P)
    for s in range(8):
        a(f"s_mov_b32 s12, {s * 8192}")
        for i in range(8):
            a(f"buffer_load_dword v{WR + 8*s + i}, v5, s[36:39], s12 offen offset:{i*512}")
        a(f"buffer_load_dwordx4 {vr(XR + 8*s, 4)}, v6, s[40:43], 0 offen offset:{s*32}")
        a(f"buffer_load_dwordx4 {vr(XR + 8*s + 4, 4)}, v6, s[40:43], s6 offen offset:{s*32}")
    for s in range(8):
        a(f"s_waitcnt vmcnt({min(63, 70 - 10*s)})")
        t = AT + 8 * (s & 1)
        for q in range(4):
            a(f"v_perm_b32 v{t+q}, v{WR+8*s+2*q+1}, v{WR+8*s+2*q}, s8")
        for q in range(4):
            a(f"v_perm_b32 v{t+4+q}, v{WR+8*s+2*q+1}, v{WR+8*s+2*q}, s9")
        a("s_nop 1")
        for tt in range(2):
            for nt in range(2):
                acc = ACC + (tt * 2 + nt) * 16
                c = "0" if s == 0 else vr(acc, 16)
                a(f"v_mfma_f32_32x32x16_bf16 {vr(acc,16)}, {vr(t+4*tt,4)}, {vr(XR+8*s+4*nt,4)}, {c}")
    a("s_nop 15")
    for nt in range(2):
        a0 = ACC + nt * 16
        a1 = ACC + (2 + nt) * 16
        for acc in (a0, a1):
            for r in range(0, 16, 2):
                a(f"v_pk_fma_f32 {vr(acc+r,2)}, {vr(acc+r,2)}, s[10:11], 0 op_sel_hi:[1,1,0]")
        for acc in (a0, a1):
            for r in range(16):
                a(f"v_add_u32 v{acc+r}, 0x8000, v{acc+r}")
        sd = "clamp dst_sel:DWORD dst_unused:UNUSED_PAD src0_sel:DWORD src1_sel:WORD_1"
        for r in range(0, 16, 2):
            a(f"v_sub_u32_sdwa v{a1+r}, v{a1+r}, v{a0+r} {sd}")
        for r in range(0, 16, 2):
            a(f"v_sub_u32_sdwa v{a0+r+1}, v{a0+r+1}, v{a1+r} {sd}")
        for r in range(0, 16, 2):
            a(f"v_sub_u32_sdwa v{a1+r+1}, v{a1+r+1}, v{a0+r+1} {sd}")
        o = WR + nt * 16
        for r in range(16):
            a(f"v_perm_b32 v{o+r}, v{a1+r}, v{a0+r}, s9")
        so = "0" if nt == 0 else "s7"
        for q in range(4):
            a(f"buffer_store_dwordx4 {vr(o+4*q,4)}, v7, s[44:47], {so} offen offset:{16*q}")
    a("s_endpgm")

    a.label("K1_NOTGEMM")
    a(f"""
    s_cmp_ge_u32 s2, {NGEMM + NP}
    s_cbranch_scc1 K1_PREP
    s_sub_u32 s4, s2, {NGEMM}
    s_mul_i32 s5, s4, {EPP}
    v_lshlrev_b32 v5, 3, v0
    v_add_u32 v5, s5, v5
    v_lshlrev_b32 v6, 2, v5
    v_lshlrev_b32 v7, 3, v5
    v_lshlrev_b32 v8, 2, v0
    v_mov_b32 v9, 0
    ds_write_b32 v8, v9
    v_cmp_gt_u32 vcc, {EPP // 8}, v0
    s_mov_b64 s[14:15], vcc
    s_waitcnt lgkmcnt(0)
    """)
    srd(a, 36, 22, E * 4)
    srd(a, 40, 20, E * 4)
    srd(a, 44, 18, E * 8)
    srd(a, 48, 32, NP * EPP * 12, off=WS_ENT)
    srd(a, 52, 32, NP * NB * 4, off=WS_TBL)
    DS, SS, EB, BK, RK = 16, 24, 32, 64, 72
    a(f"""
    s_mov_b64 exec, s[14:15]
    buffer_load_dwordx4 {vr(DS,4)}, v6, s[36:39], 0 offen
    buffer_load_dwordx4 {vr(DS+4,4)}, v6, s[36:39], 0 offen offset:16
    buffer_load_dwordx4 {vr(SS,4)}, v6, s[40:43], 0 offen
    buffer_load_dwordx4 {vr(SS+4,4)}, v6, s[40:43], 0 offen offset:16
    """)
    for k in range(8):
        a(f"buffer_load_dwordx2 {vr(EB+4*k,2)}, v7, s[44:47], 0 offen offset:{8*k}")
    a(f"""
    v_mov_b32 v9, 1
    s_mov_b32 s6, {-NPB}
    s_barrier
    s_waitcnt vmcnt(10)
    """)
    for k in range(8):
        a(f"v_mul_u32_u24 v{BK+k}, 21400, v{DS+k}")
    for k in range(8):
        a(f"v_lshrrev_b32 v{BK+k}, 20, v{BK+k}")
    for k in range(8):
        a(f"v_mad_i32_i24 v{DS+k}, v{BK+k}, s6, v{DS+k}")
        a(f"v_lshlrev_b32 v{BK+k}, 2, v{BK+k}")
        a(f"ds_add_rtn_u32 v{RK+k}, v{BK+k}, v9")
    a("s_waitcnt vmcnt(8)")
    for k in range(8):
        a(f"v_lshl_or_b32 v{EB+4*k+2}, v{DS+k}, 16, v{SS+k}")
    a(f"""
    s_mov_b64 exec, -1
    v_lshlrev_b32 v10, 4, v1
    s_waitcnt lgkmcnt(0)
    s_barrier
    ds_read_b128 v[80:83], v10
    s_lshl_b32 s7, s3, 10
    s_add_u32 s7, s7, 1024
    v_add_u32 v11, s7, v10
    s_waitcnt lgkmcnt(0)
    v_add_u32 v85, v80, v81
    v_add_u32 v86, v85, v82
    v_add_u32 v87, v86, v83
    v_mov_b32 v88, v87
    """)
    wave_scan(a, 88)
    a(f"""
    v_sub_u32 v84, v88, v87
    v_add_u32 v87, v84, v86
    v_add_u32 v86, v84, v85
    v_add_u32 v85, v84, v80
    ds_write_b128 v11, v[84:87]
    s_cmp_lg_u32 s3, 0
    s_cbranch_scc1 K1_NOTBL
    v_lshl_or_b32 v80, v80, 16, v84
    v_lshl_or_b32 v81, v81, 16, v85
    v_lshl_or_b32 v82, v82, 16, v86
    v_lshl_or_b32 v83, v83, 16, v87
    s_lshl_b32 s8, s4, 10
    buffer_store_dwordx4 v[80:83], v10, s[52:55], s8 offen
    """)
    a.label("K1_NOTBL")
    a("s_mov_b64 exec, s[14:15]")
    for k in range(8):
        a(f"v_add_u32 v{BK+k}, s7, v{BK+k}")
    a("s_waitcnt lgkmcnt(0)")
    for k in range(8):
        a(f"ds_read_b32 v{BK+k}, v{BK+k}")
    a(f"s_mul_i32 s8, s4, {EPP*12}")
    for k in range(8):
        a(f"s_waitcnt lgkmcnt({7-k})")
        a(f"v_add_u32 v{BK+k}, v{BK+k}, v{RK+k}")
        a(f"v_mul_u32_u24 v{BK+k}, 12, v{BK+k}")
        if k == 0:
            a("s_waitcnt vmcnt(0)")
        a(f"buffer_store_dwordx3 {vr(EB+4*k,3)}, v{BK+k}, s[48:51], s8 offen")
    a("s_endpgm")

    a.label("K1_PREP")
    a(f"""
    s_sub_u32 s4, s2, {NGEMM + NP}
    s_lshl_b32 s4, s4, 2
    s_add_u32 s4, s4, s3
    v_lshlrev_b32 v10, 4, v1
    s_waitcnt lgkmcnt(0)
    """)
    srd(a, 36, 24, 260 * 512)
    srd(a, 40, 28, 256 * 256)
    srd(a, 44, 32, WS_END - WS_WC, off=WS_WC)
    a(f"""
    s_cmp_ge_u32 s4, 16
    s_cbranch_scc1 K1_PREP2
    v_lshlrev_b32 v5, 12, v4
    v_lshl_add_u32 v5, v3, 4, v5
    s_lshr_b32 s5, s4, 1
    s_and_b32 s6, s4, 1
    s_lshr_b32 s7, s5, 2
    s_lshl_b32 s7, s7, 3
    s_and_b32 s8, s5, 1
    s_lshl_b32 s8, s8, 2
    s_add_u32 s7, s7, s8
    s_and_b32 s8, s5, 2
    s_add_u32 s7, s7, s8
    s_lshl_b32 s6, s6, 15
    s_add_u32 s7, s7, s6
    s_add_u32 s7, s7, {128*512}
    """)
    for f in range(4):
        for i in range(8):
            a(f"buffer_load_ushort v{16+8*f+i}, v5, s[36:39], s7 offen offset:{i*512}")
        a("s_add_u32 s7, s7, 8192")
    a(f"""
    s_lshl_b32 s8, s4, 12
    s_add_u32 s8, s8, {WS_W1BF - WS_WC}
    s_branch K1_PREP_ST
    """)
    a.label("K1_PREP2")
    a(f"""
    s_cmp_ge_u32 s4, 32
    s_cbranch_scc1 K1_PREP3
    """)
    cp_of_m(a, 5, 3, 6)
    a(f"""
    v_lshlrev_b32 v5, 1, v5
    v_lshl_add_u32 v5, v4, 12, v5
    s_sub_u32 s5, s4, 16
    s_lshr_b32 s6, s5, 2
    s_lshl_b32 s6, s6, 6
    s_and_b32 s7, s5, 2
    s_lshl_b32 s7, s7, 9
    s_add_u32 s6, s6, s7
    s_and_b32 s7, s5, 1
    s_lshl_b32 s7, s7, 15
    s_add_u32 s6, s6, s7
    """)
    cmap = (0, 2, 1, 3)
    for f in range(4):
        a(f"s_add_u32 s7, s6, {32*f*256}")
        for i in range(8):
            a(f"buffer_load_ushort v{16+8*f+i}, v5, s[40:43], s7 offen offset:{(8*(i>>2) + cmap[i&3])*256}")
    a(f"""
    s_lshl_b32 s8, s5, 12
    s_add_u32 s8, s8, {WS_W2F - WS_WC}
    """)
    a.label("K1_PREP_ST")
    a("s_waitcnt vmcnt(0)")
    for f in range(4):
        for q in range(4):
            a(f"v_lshl_or_b32 v{48+4*f+q}, v{16+8*f+2*q+1}, 16, v{16+8*f+2*q}")
        a(f"buffer_store_dwordx4 {vr(48+4*f,4)}, v10, s[44:47], s8 offen offset:{1024*f}")
    a("s_endpgm")
    a.label("K1_PREP3")
    a(f"""
    s_cmp_lg_u32 s4, 32
    s_cbranch_scc1 K1_END
    v_lshlrev_b32 v5, 4, v3
    v_lshl_add_u32 v5, v4, 2, v5
    s_mov_b32 s7, {256*512}
    s_mov_b32 s10, {NEG_L2E:#x}
    v_lshlrev_b32 v10, 3, v1
    """)
    for pb in range(4):
        p, blk = pb >> 1, pb & 1
        for k in range(4):
            a(f"buffer_load_ushort v{16+4*pb+k}, v5, s[36:39], s7 offen offset:{k*512 + p*8 + blk*2}")
    a("s_waitcnt vmcnt(0)")
    for i in range(16):
        a(f"v_lshlrev_b32 v{16+i}, 16, v{16+i}")
        a(f"v_mul_f32 v{16+i}, s10, v{16+i}")
    for pb in range(4):
        a(f"v_cvt_pk_bf16_f32 v{32+2*pb}, v{16+4*pb}, v{17+4*pb}")
        a(f"v_cvt_pk_bf16_f32 v{33+2*pb}, v{18+4*pb}, v{19+4*pb}")
        a(f"buffer_store_dwordx2 {vr(32+2*pb,2)}, v10, s[44:47], 0 offen offset:{512*pb}")
    a.label("K1_END")
    a("s_endpgm")


V_AADDR, V_AHADDR, V_IADDR, V_QADDR, V_SLANE, V_META, V_AHADDR2 = 1, 2, 3, 4, 5, 6, 11
V_CHK = 8
V_SADDR = 10
G = 12
TH = 44
TL = [76, 92]
U = 108
CH = 124
AL = 140
AH = 144
BOP = 160
IDX = 176
S_WAVE = 3
S_P = 36
S_ENT = 40
S_MISC = 44
S_X = 48
S_OUT = 52
S_TMP = 56
S_META, S_METAN, S_T, S_CNT, S_CUR, S_NXT = 60, 61, 62, 63, 64, 28
S_SAFE, S_NODE0, S_NV, S_REM, S_ULIM = 65, 66, 67, 68, 69
S_AMASK = 70
S_NT = 72
S_QDONE = 73
S_OH = 74
S_AHM = [30, 32]
S_FIX = 29
S_DONEU = 34
S_LIM = 30
S_ATOM = 35


def T(b, i):
    p, blk = b >> 1, b & 1
    return TH + 4 * i + 2 * p if blk else TL[p] + 2 * i


def Nn(b):
    return CH + 4 * b


def Dd(b):
    return CH + 4 * b + 2


def pk(op, d, *src, extra=""):
    ops = ", ".join(s if isinstance(s, str) else vr(s, 2) for s in src)
    return f"v_pk_{op}_f32 {vr(d,2)}, {ops}{extra}"


def interleave(valu, other):
    out = []
    other = list(other)
    for v in valu:
        out.append(v)
        if other:
            out.append(other.pop(0))
    return out + other


def exps(i, ub, blocks=(1, 3, 0, 2)):
    out = []
    for b in blocks:
        out.append(f"v_exp_f32 v{ub+2*b}, v{T(b,i)}")
        out.append(f"v_exp_f32 v{ub+2*b+1}, v{T(b,i)+1}")
    return out


def chain(i, ub, safe):
    out = []
    if safe:
        for b in range(4):
            out.append(pk("add", ub + 2*b, ub + 2*b, "1.0", extra=" op_sel_hi:[1,0]"))
        for k in range(8):
            out.append(f"v_rcp_f32 v{ub+k}, v{ub+k}")
        for b in range(4):
            out.append(pk("fma", Nn(b), T(b, i), ub + 2*b, Nn(b)))
        return out
    for b in range(4):
        out.append(pk("fma", Nn(b), Nn(b), ub + 2*b, Nn(b)))
    for b in range(4):
        out.append(pk("fma", Nn(b), T(b, i), Dd(b), Nn(b)))
    for b in range(4):
        out.append(pk("fma", Dd(b), Dd(b), ub + 2*b, Dd(b)))
    return out


def start(i, ub, safe):
    out = []
    if safe:
        for b in range(4):
            out.append(pk("add", ub + 2*b, ub + 2*b, "1.0", extra=" op_sel_hi:[1,0]"))
        for k in range(8):
            out.append(f"v_rcp_f32 v{ub+k}, v{ub+k}")
        for b in range(4):
            out.append(pk("mul", Nn(b), T(b, i), ub + 2*b))
        return out
    for b in range(4):
        out.append(pk("add", Dd(b), ub + 2*b, "1.0", extra=" op_sel_hi:[1,0]"))
    for b in range(4):
        out.append(f"v_pk_mov_b32 {vr(Nn(b),2)}, {vr(T(b,i),2)}, {vr(T(b,i),2)} op_sel:[0,1]")
    return out


def normalize():
    out = [pk("fma", V_CHK, Dd(0), Dd(1), V_CHK), pk("fma", V_CHK, Dd(2), Dd(3), V_CHK)]
    for b in range(4):
        out.append(f"v_rcp_f32 v{Dd(b)}, v{Dd(b)}")
        out.append(f"v_rcp_f32 v{Dd(b)+1}, v{Dd(b)+1}")
    for b in (0, 2, 1, 3):
        out.append(pk("mul", Nn(b), Nn(b), Dd(b)))
    return out


def flush(safe):
    out = [f"v_add_u32 v{V_SADDR}, s{S_CUR}, v{V_SLANE}"]
    if safe:
        out.append("s_nop 0")
    out += [f"v_permlane32_swap_b32 v{Nn(0)}, v{Nn(2)}",
            f"v_permlane32_swap_b32 v{Nn(0)+1}, v{Nn(2)+1}",
            f"v_permlane32_swap_b32 v{Nn(1)}, v{Nn(3)}",
            f"v_permlane32_swap_b32 v{Nn(1)+1}, v{Nn(3)+1}",
            pk("add", Nn(0), Nn(0), Nn(2)),
            pk("add", Dd(0), Nn(1), Nn(3))]
    if safe:
        for q in range(4):
            out.append(f"ds_add_f32 v{V_SADDR}, v{CH+q} offset:{4*q}")
    else:
        out.append(f"ds_write_b128 v{V_SADDR}, {vr(CH,4)}")
    return out


def gather_loads():
    return [f"buffer_load_dwordx4 {vr(G+4*i,4)}, {vr(IDX+2*i,2)}, s[{S_P}:{S_P+3}], 0 idxen offen" for i in range(8)]


def idx_reads(off):
    return [f"ds_read_b32 v{IDX+2*i}, v{V_IADDR} offset:{off + 8*i}" for i in range(8)]


def a_reads():
    return [f"ds_read_b128 {vr(AL,4)}, v{V_AADDR}",
            f"ds_read_b128 {vr(AH,4)}, v{V_AHADDR}",
            f"ds_read_b128 {vr(AH+4,4)}, v{V_AHADDR2}",
            f"ds_read_b128 {vr(AH+8,4)}, v{V_AHADDR} offset:128",
            f"ds_read_b128 {vr(AH+12,4)}, v{V_AHADDR2} offset:128"]


def q_reads():
    return [f"ds_read_b64 {vr(BOP+4*b+2,2)}, v{V_QADDR} offset:{512*b}" for b in range(4)]


def gen_loop(a, safe):
    L = "K2S" if safe else "K2F"

    def emit(lst):
        for x in lst:
            a(x)

    def mf_hi(beta, p):
        c = G + 16 * beta if p == 0 else TH + 16 * beta
        return f"v_mfma_f32_32x32x16_bf16 {vr(TH+16*beta,16)}, {vr(AH+8*beta+4*p,4)}, {vr(BOP+4*(2*p+1),4)}, {vr(c,16)}"

    def mf_lo(p):
        return f"v_mfma_f32_32x32x16_bf16 {vr(TL[p],16)}, {vr(AL,4)}, {vr(BOP+4*(2*p),4)}, {vr(TL[p],16)}"

    def lshl(p, i):
        return f"v_lshlrev_b64 {vr(TL[p]+2*i,2)}, 16, {vr(G+4*i+2*p,2)}"

    e0 = exps(0, U)
    e1 = exps(1, U + 8)
    gl = gather_loads()
    ir = idx_reads(64)
    ard = a_reads()
    qr = q_reads()
    a.raw(".p2align 6")
    a.label(f"{L}_LOOP")
    a("s_waitcnt vmcnt(0)")
    a.label(f"{L}_ENTRY")
    a("s_waitcnt lgkmcnt(0)")
    a(mf_hi(0, 0))
    a(f"s_add_u32 s{S_T}, s{S_T}, 1")
    a(f"v_readlane_b32 s{S_METAN}, v{V_META}, s{S_T}")
    a(f"s_cmp_lt_u32 s{S_T}, s{S_CNT}")
    emit([lshl(0, i) for i in range(4)])
    a(mf_hi(0, 1))
    a(f"s_cselect_b32 s{S_P+2}, {OPT.get('nrec', N)}, 0")
    emit([lshl(0, i) for i in range(4, 8)])
    a(f"v_add_u32 v{V_AHADDR}, 256, v{V_AHADDR}")
    a(f"v_add_u32 v{V_AHADDR2}, 256, v{V_AHADDR2}")
    a(mf_lo(0))
    a(f"s_bfe_u32 s4, s{S_METAN}, 0x10018")
    emit([lshl(1, i) for i in range(6)])
    a(mf_hi(1, 0))
    a(f"s_lshl_b32 s4, s4, 11")
    emit([lshl(1, 6), lshl(1, 7)])
    a(f"v_add_u32 v{V_QADDR}, s4, v{V_QADDR}")
    a(f"v_add_u32 v{V_IADDR}, 64, v{V_IADDR}")
    emit([e0[0], gl[0]])
    a(mf_lo(1))
    emit([ard[1], e0[1], gl[1], e0[2], ard[2], e0[3], gl[2]])
    a(mf_hi(1, 1))
    a(qr[0])
    a(f"v_add_u32 v{V_AADDR}, 256, v{V_AADDR}")
    rest = e1[0:4] + e0[4:6] + e1[4:6] + e0[6:8] + e1[6:8]
    oth = [[gl[3], ir[0]], [ard[3], ir[1]], [gl[4], ir[2]], [qr[1], ir[3]], [gl[5], ard[0]], [qr[2], ir[4]], [gl[6], ir[5]],
           [ard[4], qr[3]], [gl[7], ir[6]], [ir[7]], [f"s_bitcmp1_b32 s{S_META}, 0"], []]
    for v, o in zip(rest, oth):
        a(v)
        emit(o)
    a(f"s_cbranch_scc1 {L}_STUB0")
    a.label(f"{L}_C0")
    emit(chain(0, U, safe))
    a.label(f"{L}_S1")
    a(f"s_bitcmp1_b32 s{S_META}, 1")
    a(f"s_cbranch_scc1 {L}_STUB1")
    a.label(f"{L}_C1")
    emit(chain(1, U + 8, safe))
    for i in range(2, 8):
        a.label(f"{L}_S{i}")
        a(f"s_bitcmp1_b32 s{S_META}, {i}")
        a(f"s_cbranch_scc1 {L}_STUB{i}")
        a.label(f"{L}_C{i}")
        emit(exps(i, U, blocks=(0, 1, 2, 3)))
        emit(chain(i, U, safe))
    a.label(f"{L}_S8")
    a(f"s_mov_b32 s{S_META}, s{S_METAN}")
    a(f"s_cmp_lt_u32 s{S_T}, s{S_LIM}")
    a(f"s_cbranch_scc1 {L}_LOOP")
    a(f"s_setprio 0")
    a(f"s_mov_b32 s{S_LIM}, s{S_CNT}")
    a(f"s_cmp_lt_u32 s{S_T}, s{S_CNT}")
    a(f"s_cbranch_scc1 {L}_LOOP")
    if not safe:
        emit(normalize())
    emit(flush(safe))
    a("s_branch K2_LOOPDONE")
    for i in range(8):
        a.label(f"{L}_STUB{i}")
        a(f"s_bitcmp0_b32 s{S_META}, {8+i}")
        a(f"s_cbranch_scc1 {L}_RARE{i}")
        if not safe:
            emit(normalize())
        emit(flush(safe))
        a(f"s_mov_b32 s{S_CUR}, s{S_NXT}")
        a(f"s_add_u32 s{S_NXT}, s{S_NXT}, {SROW}")
        ub = U + 8 if i == 1 else U
        if i >= 2:
            emit(exps(i, U, blocks=(0, 1, 2, 3)))
        else:
            a("s_nop 0")
        emit(start(i, ub, safe))
        a(f"s_branch {L}_S{i+1}")
    for i in range(8):
        a.label(f"{L}_RARE{i}")
        if i > 0:
            a(f"s_bitcmp1_b32 s{S_META}, {16+i}")
            a(f"s_cbranch_scc1 {L}_S8")
        if not safe:
            emit(normalize())
            for b in range(4):
                a(f"v_mov_b32 v{Dd(b)}, 1.0")
                a(f"v_mov_b32 v{Dd(b)+1}, 1.0")
        a(f"s_branch {L}_C{i}")


def gen_k2(a):
    EB = TH
    W1B = G
    LANE, L31, KH, WV = 92, 93, 94, 95
    SEG, REM, CNTU, ONE = 96, 97, 98, 99
    t0, t1, t2, t3, t4, t5 = 100, 101, 102, 103, 104, 105
    L16 = 106
    a.raw(".p2align 8")
    a.label("k2_kernel")
    a(f"""
    s_cmp_ge_u32 s2, {NB}
    s_cbranch_scc1 K2_END
    """)
    stamp(a, 0)
    if DEBUG_STAMPS:
        a("s_memrealtime s[96:97]")
    a(f"""
    s_load_dwordx2 s[16:17], s[0:1], 0
    s_load_dwordx2 s[18:19], s[0:1], 40
    s_load_dwordx4 s[20:23], s[0:1], 56
    s_load_dwordx4 s[24:27], s[0:1], 72
    s_mov_b32 s{S_SAFE}, 0
    v_lshrrev_b32 v{WV}, 6, v0
    s_mul_i32 s{S_NODE0}, s2, {NPB}
    v_readfirstlane_b32 s{S_WAVE}, v{WV}
    s_sub_u32 s{S_NV}, {N}, s{S_NODE0}
    s_min_u32 s{S_NV}, s{S_NV}, {NPB}
    s_mov_b32 s{S_AMASK}, 0x55555555
    s_mov_b32 s{S_AMASK+1}, 0xaaaaaaaa
    s_mov_b32 s{S_AHM[0]}, 0x11111111
    s_mov_b32 s{S_AHM[0]+1}, 0x22222222
    s_mov_b32 s{S_AHM[1]}, 0x44444444
    s_mov_b32 s{S_AHM[1]+1}, 0x88888888
    s_mov_b32 s{S_OH}, 0x3f80
    s_mov_b32 s{S_OH+1}, 0
    s_waitcnt lgkmcnt(0)
    """)
    srd(a, S_P, 26, N, off=WS_P, stride=512)
    srd(a, S_ENT, 26, NP * EPP * 12, off=WS_ENT)
    srd(a, S_MISC, 26, WS_END - WS_WC, off=WS_WC)
    srd(a, S_X, 16, N * 256)
    srd(a, S_OUT, 22, N * 256)
    a.label("K2_RESTART")
    a(f"""
    s_mov_b32 s{S_QDONE}, 0
    s_mov_b32 s{S_DONEU}, 0
    v_mov_b32 v{V_CHK}, 0
    v_mov_b32 v{V_CHK+1}, 0
    """)
    a.label("K2_ROUND")
    srd(a, S_TMP, 26, NP * NB * 4, off=WS_TBL)
    a(f"""
    v_lshrrev_b32 v{t0}, 1, v0
    v_lshlrev_b32 v{t1}, 10, v{t0}
    s_lshl_b32 s4, s2, 2
    buffer_load_dword v7, v{t1}, s[{S_TMP}:{S_TMP+3}], s4 offen
    v_and_b32 v{LANE}, 63, v0
    v_and_b32 v{L31}, 31, v0
    v_bfe_u32 v{KH}, v0, 5, 1
    v_lshrrev_b32 v{WV}, 6, v0
    v_lshlrev_b32 v{L16}, 4, v{LANE}
    s_lshl_b32 s5, s{S_WAVE}, 13
    s_add_u32 s5, s5, {WS_W1BF - WS_WC}
    s_add_u32 s6, s5, 4096
    """)
    for s in range(8):
        a(f"buffer_load_dwordx4 {vr(W1B+4*s,4)}, v{L16}, s[{S_MISC}:{S_MISC+3}], s{5 + (s>>2)} offen offset:{(s&3)*1024}")
    a(f"""
    v_lshlrev_b32 v{t2}, 4, v0
    v_add_u32 v{t2}, {L_REC}, v{t2}
    v_mov_b32 v108, 0
    v_mov_b32 v109, 0
    v_mov_b32 v110, 0
    v_mov_b32 v111, 0
    v_mov_b32 v112, 0x3fff
    v_mov_b32 v113, 0x3fff
    v_mov_b32 v114, 0x3fff
    v_mov_b32 v115, 0x3fff
    """)
    for k in range(5):
        a(f"ds_write_b128 v{t2}, v[108:111] offset:{8192*k}")
    a(f"ds_write_b128 v{t2}, v[112:115] offset:{L_IDX - L_REC}")
    a(f"ds_write_b128 v{t2}, v[112:115] offset:{L_IDX - L_REC + 8192}")
    for r in range(AL, AL + 20):
        a(f"v_mov_b32 v{r}, 0")
    for i in range(8):
        a(f"v_lshlrev_b32 v{IDX+2*i+1}, 4, v{L31}")
    a(f"""
    v_mov_b32 v{V_SLANE}, v{L16}
    v_and_b32 v{t3}, 1, v0
    s_waitcnt vmcnt(8)
    v_and_b32 v{t1}, 0xffff, v7
    v_lshrrev_b32 v{t2}, 16, v7
    v_mul_u32_u24 v{t4}, {EPP}, v{t0}
    v_add3_u32 v{t1}, v{t1}, v{t4}, v{t3}
    v_mul_u32_u24 v{SEG}, 12, v{t1}
    v_sub_u32 v{REM}, v{t2}, v{t3}
    v_add_u32 v{REM}, 1, v{REM}
    v_lshrrev_b32 v{REM}, 1, v{REM}
    s_mul_i32 s4, s{S_DONEU}, 24
    v_add_u32 v{SEG}, s4, v{SEG}
    v_subrev_u32 v{REM}, s{S_DONEU}, v{REM}
    v_max_i32 v{REM}, 0, v{REM}
    """)
    stamp(a, 1)
    for u in range(UMAX):
        a(f"v_cmp_lt_u32 vcc, {u}, v{REM}")
        a(f"s_mov_b64 exec, vcc")
        a(f"s_cbranch_execz K2_ELD_DONE")
        a(f"buffer_load_dwordx3 {vr(EB+4*u,3)}, v{SEG}, s[{S_ENT}:{S_ENT+3}], 0 offen offset:{24*u}")
    a.label("K2_ELD_DONE")
    a("s_mov_b64 exec, -1")
    a(f"v_mov_b32 v{t0}, v{REM}")
    wave_scan(a, t0)
    a(f"""
    v_mov_b32 v{t1}, {L_WSUM}
    v_lshl_add_u32 v{t1}, v{WV}, 2, v{t1}
    s_mov_b32 exec_lo, 0
    s_mov_b32 exec_hi, 0x80000000
    ds_write_b32 v{t1}, v{t0}
    s_mov_b64 exec, -1
    s_waitcnt lgkmcnt(0)
    s_barrier
    v_mov_b32 v{t1}, {L_WSUM}
    ds_read_b128 v[108:111], v{t1}
    ds_read_b128 v[112:115], v{t1} offset:16
    s_waitcnt lgkmcnt(0)
    v_add3_u32 v108, v108, v109, v110
    v_add3_u32 v111, v111, v112, v113
    v_add3_u32 v108, v108, v114, v115
    v_add_u32 v108, v108, v111
    s_nop 0
    v_readfirstlane_b32 s{S_REM}, v108
    s_cmp_le_u32 s{S_REM}, {CAP}
    s_cselect_b32 s{S_ULIM}, {UMAX}, {CAP // 500}
    v_min_u32 v{CNTU}, s{S_ULIM}, v{REM}
    v_mov_b32 v{ONE}, 1
    v_mov_b32 v{t1}, {L_CNT}
    s_add_u32 s{S_DONEU}, s{S_DONEU}, s{S_ULIM}
    s_waitcnt vmcnt(0)
    """)
    stamp(a, 2)
    for u in range(UMAX):
        a(f"v_cmp_lt_u32 vcc, {u}, v{CNTU}")
        a(f"s_mov_b64 exec, vcc")
        a(f"s_cbranch_execz K2_HIST_DONE")
        a(f"v_lshrrev_b32 v{t0}, 16, v{EB+4*u+2}")
        a(f"v_lshl_add_u32 v{t0}, v{t0}, 2, v{t1}")
        a(f"ds_add_rtn_u32 v{EB+4*u+3}, v{t0}, v{ONE}")
    a.label("K2_HIST_DONE")
    a(f"""
    s_mov_b64 exec, -1
    v_lshl_add_u32 v{t0}, v{LANE}, 2, v{t1}
    s_waitcnt lgkmcnt(0)
    s_barrier
    ds_read_b32 v112, v{t0}
    """)
    stamp(a, 3)
    a(f"""
    s_waitcnt lgkmcnt(0)
    v_add_u32 v113, 1, v112
    v_lshrrev_b32 v113, 1, v113
    v_max_u32 v113, 1, v113
    v_cmp_gt_u32 vcc, s{S_NV}, v{LANE}
    s_nop 1
    v_cndmask_b32 v113, 0, v113, vcc
    s_nop 1
    v_mov_b32_dpp v114, v113 quad_perm:[0,0,0,0] row_mask:0xf bank_mask:0xf
    v_mov_b32_dpp v115, v113 quad_perm:[1,1,1,1] row_mask:0xf bank_mask:0xf
    v_mov_b32_dpp v116, v113 quad_perm:[2,2,2,2] row_mask:0xf bank_mask:0xf
    v_mov_b32_dpp v117, v113 quad_perm:[3,3,3,3] row_mask:0xf bank_mask:0xf
    v_add3_u32 v118, v114, v115, v116
    v_add_u32 v118, v118, v117
    v_and_b32 v119, 3, v{LANE}
    v_cmp_lt_u32 vcc, 0, v119
    s_nop 1
    v_cndmask_b32 v114, 0, v114, vcc
    v_cmp_lt_u32 vcc, 1, v119
    s_nop 1
    v_cndmask_b32 v115, 0, v115, vcc
    v_cmp_lt_u32 vcc, 2, v119
    s_nop 1
    v_cndmask_b32 v116, 0, v116, vcc
    v_add3_u32 v114, v114, v115, v116
    v_add_u32 v120, 7, v118
    v_lshrrev_b32 v120, 3, v120
    v_cndmask_b32 v121, 0, v120, vcc
    v_mov_b32 v122, v121
    v_mov_b32 v123, v112
    """)
    wave_scan(a, 122)
    wave_scan(a, 123)
    a(f"""
    v_sub_u32 v122, v122, v121
    s_nop 0
    v_readlane_b32 s{S_NT}, v122, 63
    v_readlane_b32 s4, v123, 63
    v_lshl_add_u32 v124, v122, 3, v114
    s_sub_u32 s{S_REM}, s{S_REM}, s4
    v_lshlrev_b32 v125, 1, v124
    """)
    a(f"""
    s_cmp_lg_u32 s{S_WAVE}, 0
    s_cbranch_scc1 K2_NOMETA
    v_lshlrev_b32 v126, 2, v{LANE}
    v_add_u32 v126, {L_DEG}, v126
    s_cmp_lg_u32 s{S_QDONE}, 0
    s_cbranch_scc1 K2_DEGADD
    v_mov_b32 v127, 0
    ds_write_b32 v126, v127
    ds_write_b32 v126, v127 offset:256
    """)
    a.label("K2_DEGADD")
    a(f"""
    ds_add_u32 v126, v112
    v_cmp_gt_u32 vcc, s{S_NV}, v{LANE}
    s_mov_b64 exec, vcc
    v_lshrrev_b32 v126, 3, v124
    v_lshlrev_b32 v126, 2, v126
    v_and_b32 v127, 7, v124
    v_lshlrev_b32 v127, v127, v{ONE}
    v_mul_u32_u24 v127, 0x101, v127
    v_cmp_eq_u32 vcc, 0, v119
    v_mov_b32 v128, 0x1000000
    s_nop 0
    v_cndmask_b32 v128, 0, v128, vcc
    v_or_b32 v127, v127, v128
    v_add_u32 v126, {L_META}, v126
    ds_or_b32 v126, v127
    s_and_b64 exec, exec, vcc
    v_and_b32 v127, 7, v118
    v_cmp_ne_u32 vcc, 0, v127
    s_and_b64 exec, exec, vcc
    v_add_u32 v126, v122, v120
    v_lshlrev_b32 v126, 2, v126
    v_add_u32 v126, {L_META - 4}, v126
    v_lshlrev_b32 v127, v127, v{ONE}
    v_mul_u32_u24 v127, 0x10001, v127
    ds_or_b32 v126, v127
    s_mov_b64 exec, -1
    v_mov_b32 v126, v124
    v_mov_b32 v127, v113
    """)
    a.label("K2_CUTLOOP")
    a(f"""
    v_cmp_lt_u32 vcc, {CUT//2}, v127
    s_mov_b64 exec, vcc
    s_cbranch_execz K2_CUTDONE
    v_add_u32 v126, {CUT//2}, v126
    v_subrev_u32 v127, {CUT//2}, v127
    v_lshrrev_b32 v128, 3, v126
    v_lshlrev_b32 v128, 2, v128
    v_add_u32 v128, {L_META}, v128
    v_and_b32 v129, 7, v126
    v_lshlrev_b32 v129, v129, v{ONE}
    ds_or_b32 v128, v129
    s_branch K2_CUTLOOP
    """)
    a.label("K2_CUTDONE")
    a("s_mov_b64 exec, -1")
    a.label("K2_NOMETA")
    BP = 126
    for u in range(UMAX):
        e = EB + 4 * u
        a(f"v_cmp_lt_u32 vcc, {u}, v{CNTU}")
        a(f"s_cbranch_vccz K2_BP_DONE")
        a(f"v_lshrrev_b32 v{t0}, 14, v{e+2}")
        a(f"ds_bpermute_b32 v{BP+u}, v{t0}, v125")
    a.label("K2_BP_DONE")
    a(f"s_waitcnt lgkmcnt(0)")
    for u in range(UMAX):
        e = EB + 4 * u
        a(f"v_cmp_lt_u32 vcc, {u}, v{CNTU}")
        a(f"s_mov_b64 exec, vcc")
        a(f"s_cbranch_execz K2_SCAT_DONE")
        a(f"v_add_lshl_u32 v{t0}, v{BP+u}, v{e+3}, 2")
        a(f"v_and_b32 v{t1}, 0xffff, v{e+2}")
        a(f"v_lshrrev_b32 v{t2}, 12, v{e+2}")
        a(f"v_and_b32 v{t2}, 48, v{t2}")
        a(f"v_lshlrev_b64 {vr(e+2,2)}, v{t2}, s[{S_OH}:{S_OH+1}]")
        a(f"v_lshlrev_b32 v{t3}, 2, v{t0}")
        a(f"v_add_u32 v{t0}, {L_IDX}, v{t0}")
        a(f"ds_write_b128 v{t3}, {vr(e,4)} offset:{L_REC}")
        a(f"ds_write_b32 v{t0}, v{t1}")
    a.label("K2_SCAT_DONE")
    a("s_mov_b64 exec, -1")
    stamp(a, 4)
    a(f"""
    s_mul_i32 s4, s{S_NT}, s{S_WAVE}
    s_lshr_b32 s5, s4, 3
    s_add_u32 s4, s4, s{S_NT}
    s_lshr_b32 s4, s4, 3
    s_sub_u32 s{S_CNT}, s4, s5
    s_lshl_b32 s6, s5, 3
    v_cmp_ge_u32 vcc, s6, v124
    v_cmp_gt_u32 s[8:9], s{S_NV}, v{LANE}
    s_and_b64 vcc, vcc, s[8:9]
    s_bcnt1_i32_b64 s7, vcc
    s_mul_i32 s{S_NXT}, s7, {SROW}
    s_sub_u32 s7, s7, 1
    s_mul_i32 s{S_CUR}, s7, {SROW}
    s_lshr_b32 s7, s7, 2
    s_lshl_b32 s7, s7, 11
    s_add_u32 s7, s7, {L_QT}
    v_lshlrev_b32 v{V_QADDR}, 3, v{LANE}
    v_add_u32 v{V_QADDR}, s7, v{V_QADDR}
    s_lshl_b32 s7, s5, 6
    s_add_u32 s7, s7, {L_IDX}
    v_lshlrev_b32 v{V_IADDR}, 2, v{KH}
    v_add_u32 v{V_IADDR}, s7, v{V_IADDR}
    v_lshrrev_b32 v{t0}, 3, v{L31}
    v_bfe_u32 v{t1}, v{L31}, 2, 1
    v_lshlrev_b32 v{t1}, 4, v{t1}
    s_lshl_b32 s7, s5, 8
    s_add_u32 s7, s7, {L_REC}
    v_add_u32 v{t1}, s7, v{t1}
    v_lshl_add_u32 v{V_AHADDR}, v{t0}, 5, v{t1}
    v_lshl_add_u32 v{V_AADDR}, v{t0}, 6, v{t1}
    v_bfe_u32 v{t0}, v{L31}, 1, 1
    v_lshl_add_u32 v{V_AADDR}, v{t0}, 5, v{V_AADDR}
    s_lshl_b32 s7, s5, 2
    s_add_u32 s7, s7, {L_META}
    v_lshlrev_b32 v{t0}, 2, v{LANE}
    v_add_u32 v7, s7, v{t0}
    s_lshr_b32 s4, s{S_NT}, 3
    s_lshl_b32 s4, s4, 3
    v_cmp_le_u32 vcc, s4, v113
    s_cmp_lg_u64 vcc, 0
    s_cselect_b32 s{S_ATOM}, 1, 0
    """)
    a(f"""
    s_cmp_lg_u32 s{S_QDONE}, 0
    s_cbranch_scc1 K2_NOQ
    """)
    a(f"""
    v_add_u32 v{t0}, s{S_NODE0}, v{L31}
    v_lshlrev_b32 v{t0}, 8, v{t0}
    v_lshl_add_u32 v{t0}, v{KH}, 4, v{t0}
    s_mov_b32 s6, 8192
    """)
    for s in range(8):
        a(f"buffer_load_dwordx4 {ar(8*s,4)}, v{t0}, s[{S_X}:{S_X+3}], 0 offen offset:{32*s}")
        a(f"buffer_load_dwordx4 {ar(8*s+4,4)}, v{t0}, s[{S_X}:{S_X+3}], s6 offen offset:{32*s}")
    srd(a, S_TMP, 18, 512)
    a(f"""
    s_lshr_b32 s4, s{S_WAVE}, 2
    s_lshl_b32 s4, s4, 3
    s_and_b32 s5, s{S_WAVE}, 1
    s_lshl_b32 s5, s5, 2
    s_add_u32 s4, s4, s5
    s_and_b32 s5, s{S_WAVE}, 2
    s_add_u32 s4, s4, s5
    buffer_load_ushort v{t1}, v{IDX+1}, s[{S_TMP}:{S_TMP+3}], s4 offen
    v_lshlrev_b32 v{t2}, 3, v{LANE}
    """)
    for b in range(4):
        a(f"buffer_load_dwordx2 {vr(BOP+4*b,2)}, v{t2}, s[{S_MISC}:{S_MISC+3}], 0 offen offset:{512*b}")
    QA = 108
    for s in range(8):
        a(f"s_waitcnt vmcnt({19 - 2*s})")
        for nt in range(2):
            acc = QA + 16 * nt
            c = "0" if s == 0 else vr(acc, 16)
            a(f"v_mfma_f32_32x32x16_bf16 {vr(acc,16)}, {ar(8*s+4*nt,4)}, {vr(W1B+4*s,4)}, {c}")
    a(f"""
    s_waitcnt vmcnt(0)
    s_mov_b32 s8, {NEG_L2E:#x}
    s_mov_b32 s9, {NEG_L2E:#x}
    v_lshlrev_b32 v{t0}, 16, v{t1}
    v_mul_f32 v{t0}, s8, v{t0}
    v_mov_b32 v{t1}, v{t0}
    s_lshl_b32 s4, s{S_WAVE}, 8
    s_add_u32 s4, s4, {L_QT}
    v_lshlrev_b32 v{t2}, 3, v{L31}
    v_lshl_add_u32 v{t2}, v{KH}, 11, v{t2}
    v_add_u32 v{t2}, s4, v{t2}
    s_nop 7
    """)
    for r in range(0, 32, 2):
        a(f"v_pk_fma_f32 {vr(QA+r,2)}, {vr(QA+r,2)}, s[8:9], {vr(t0,2)}")
    for q in range(8):
        a(f"v_cvt_pk_bf16_f32 v{QA+4*q}, v{QA+4*q}, v{QA+1+4*q}")
        a(f"v_cvt_pk_bf16_f32 v{QA+1+4*q}, v{QA+2+4*q}, v{QA+3+4*q}")
        a(f"ds_write_b64 v{t2}, {vr(QA+4*q,2)} offset:{4096*q}")
    a.label("K2_NOQ")
    a(f"""
    s_waitcnt lgkmcnt(0)
    s_barrier
    ds_read_b32 v{V_META}, v7
    """)
    stamp(a, 5)
    for x in idx_reads(0):
        a(x)
    a(f"s_cmp_lg_u32 s{S_CNT}, 0")
    a(f"s_cselect_b32 s{S_P+2}, {N}, 0")
    for b in range(4):
        a(f"v_mov_b32 v{Nn(b)}, 0")
        a(f"v_mov_b32 v{Nn(b)+1}, 0")
        a(f"v_mov_b32 v{Dd(b)}, 1.0")
        a(f"v_mov_b32 v{Dd(b)+1}, 1.0")
    a("s_waitcnt lgkmcnt(0)")
    for x in gather_loads() + idx_reads(64) + a_reads() + q_reads():
        a(x)
    a(f"""
    s_and_b32 s4, s{S_WAVE}, 3
    s_lshl_b32 s4, s4, 14
    s_add_u32 s4, s4, {WS_W2F - WS_WC}
    """)
    for s in range(16):
        a(f"buffer_load_dwordx4 {ar(4*s,4)}, v{V_SLANE}, s[{S_MISC}:{S_MISC+3}], s4 offen offset:{(s&3)*1024}")
        if s & 3 == 3:
            a("s_add_u32 s4, s4, 4096")
    a(f"""
    v_readlane_b32 s{S_META}, v{V_META}, 0
    s_mov_b32 s{S_T}, 0
    s_mov_b32 s{S_FIX}, -1
    s_cmp_eq_u32 s{S_CNT}, 0
    s_cbranch_scc1 K2_LOOPDONE
    s_or_b32 s4, s{S_SAFE}, s{S_QDONE}
    s_cmp_lg_u32 s4, 0
    s_cbranch_scc1 K2_GOSAFE
    s_mul_i32 s5, s{S_WAVE}, {SROW}
    s_add_u32 s5, s5, {52*SROW}
    s_bitcmp1_b32 s{S_META}, 8
    s_cselect_b32 s{S_FIX}, -1, s{S_CUR}
    s_cselect_b32 s{S_CUR}, s{S_CUR}, s5
    s_and_b32 s{S_META}, s{S_META}, 0xfffffffe
    s_waitcnt vmcnt(16)
    s_branch K2F_ENTRY
    """)
    a.label("K2_GOSAFE")
    a(f"""
    s_and_b32 s{S_META}, s{S_META}, 0xfffffffe
    s_branch K2S_LOOP
    """)
    i0 = len(a.lines)
    gen_loop(a, False)
    a.lines[i0:] = align8(a.lines[i0:])
    gen_loop(a, True)
    a.label("K2_LOOPDONE")
    stamp(a, 6)
    srd(a, S_TMP, 20, 256)
    E_L31, E_KH, E_NODE, E_H32, E_SA, E_DEG = 92, 93, 94, 95, 96, 97
    B2R = 100
    a(f"""
    v_and_b32 v{E_L31}, 31, v0
    v_bfe_u32 v{E_KH}, v0, 5, 1
    s_and_b32 s4, s{S_WAVE}, 3
    s_lshr_b32 s5, s{S_WAVE}, 2
    s_lshl_b32 s6, s4, 6
    v_lshlrev_b32 v{E_H32}, 5, v{E_KH}
    buffer_load_dwordx4 {vr(B2R,4)}, v{E_H32}, s[{S_TMP}:{S_TMP+3}], s6 offen
    buffer_load_dwordx4 {vr(B2R+4,4)}, v{E_H32}, s[{S_TMP}:{S_TMP+3}], s6 offen offset:16
    s_lshl_b32 s7, s5, 5
    v_add_u32 v{E_NODE}, s7, v{E_L31}
    v_mul_u32_u24 v{E_SA}, {SROW}, v{E_NODE}
    v_add_u32 v{E_SA}, v{E_SA}, v{E_H32}
    s_mul_i32 s5, s{S_WAVE}, {SROW}
    s_add_u32 s5, s5, {52*SROW}
    v_add_u32 v10, s5, v{V_SLANE}
    v_add_u32 v11, s{S_FIX}, v{V_SLANE}
    s_mov_b32 s{S_QDONE}, 1
    s_waitcnt lgkmcnt(0)
    s_barrier
    s_cmp_eq_u32 s{S_FIX}, -1
    s_cbranch_scc1 K2_NOFIX
    ds_read_b128 v[12:15], v10
    s_cmp_lg_u32 s{S_ATOM}, 0
    s_cbranch_scc1 K2_FIXATOM
    ds_read_b128 v[16:19], v11
    s_waitcnt lgkmcnt(0)
    v_pk_add_f32 v[12:13], v[12:13], v[16:17]
    v_pk_add_f32 v[14:15], v[14:15], v[18:19]
    ds_write_b128 v11, v[12:15]
    s_branch K2_NOFIX
    """)
    a.label("K2_FIXATOM")
    a(f"""
    s_waitcnt lgkmcnt(0)
    ds_add_f32 v11, v12
    ds_add_f32 v11, v13 offset:4
    ds_add_f32 v11, v14 offset:8
    ds_add_f32 v11, v15 offset:12
    """)
    a.label("K2_NOFIX")
    a(f"""
    s_cmp_lg_u32 s{S_REM}, 0
    s_cbranch_scc1 K2_NEXTROUND
    v_lshlrev_b32 v10, 2, v{E_NODE}
    v_add_u32 v10, {L_DEG}, v10
    ds_read_b32 v{E_DEG}, v10
    v_max_f32 v10, v{V_CHK}, v{V_CHK+1}
    v_mov_b32 v11, 0x6b800000
    v_cmp_nlt_f32 vcc, v10, v11
    v_cmp_u_f32 s[8:9], v{V_CHK}, v{V_CHK+1}
    s_or_b64 s[10:11], vcc, s[8:9]
    s_waitcnt lgkmcnt(0)
    s_barrier
    """)
    stamp(a, 7)
    ACC = 124
    RD = 12
    CV = 76
    for half in range(2):
        for s in range(8):
            ss = half * 8 + s
            a(f"ds_read_b128 {vr(RD+8*s,4)}, v{E_SA} offset:{L_S + 64*ss}")
            a(f"ds_read_b128 {vr(RD+4+8*s,4)}, v{E_SA} offset:{L_S + 64*ss + 16}")
        for s in range(8):
            ss = half * 8 + s
            a(f"s_waitcnt lgkmcnt({min(15, 14 - 2*s)})")
            t = CV + 4 * (s & 3)
            for q in range(4):
                a(f"v_cvt_pk_bf16_f32 v{t+q}, v{RD+8*s+2*q}, v{RD+1+8*s+2*q}")
            if ss == 0:
                a("s_waitcnt vmcnt(0)")
            a("s_nop 1")
            c = "0" if ss == 0 else vr(ACC, 16)
            a(f"v_mfma_f32_32x32x16_bf16 {vr(ACC,16)}, {ar(4*ss,4)}, {vr(t,4)}, {c}")
    a(f"""
    v_cvt_f32_u32 v{E_DEG}, v{E_DEG}
    s_mov_b32 s8, {NEG_LN2:#x}
    s_mov_b32 s9, {NEG_LN2:#x}
    """)
    for q in range(8):
        a(f"v_lshlrev_b32 v{RD+2*q}, 16, v{B2R+q}")
        a(f"v_and_b32 v{RD+1+2*q}, 0xffff0000, v{B2R+q}")
    for r in range(16):
        a(f"v_mul_f32 v{RD+r}, v{E_DEG}, v{RD+r}")
    a("v_mov_b32 v10, 0")
    a("v_mov_b32 v11, 0")
    for r in range(0, 16, 2):
        a(f"v_pk_fma_f32 v[10:11], {vr(ACC+r,2)}, 0, v[10:11] op_sel_hi:[1,0,1]")
        a(f"v_pk_fma_f32 {vr(RD+r,2)}, {vr(ACC+r,2)}, s[8:9], {vr(RD+r,2)}")
    for q in range(8):
        a(f"v_cvt_pk_bf16_f32 v{32+q}, v{RD+2*q}, v{RD+1+2*q}")
    a(f"""
    v_add_u32 v40, s{S_NODE0}, v{E_NODE}
    v_lshlrev_b32 v40, 8, v40
    v_add_u32 v40, v40, v{E_H32}
    v_cmp_gt_u32 vcc, s{S_NV}, v{E_NODE}
    v_cmp_u_f32 s[8:9], v10, v11
    s_and_b64 s[8:9], s[8:9], vcc
    s_or_b64 s[10:11], s[10:11], s[8:9]
    s_mov_b64 exec, vcc
    s_cbranch_execz K2_NOST
    buffer_store_dwordx4 v[32:35], v40, s[{S_OUT}:{S_OUT+3}], s6 offen
    buffer_store_dwordx4 v[36:39], v40, s[{S_OUT}:{S_OUT+3}], s6 offen offset:16
    """)
    a.label("K2_NOST")
    a(f"""
    s_mov_b64 exec, -1
    s_cmp_lg_u32 s{S_SAFE}, 0
    s_cbranch_scc1 K2_END
    v_mov_b32 v11, {L_FLAG}
    v_mov_b32 v10, 1
    s_cmp_eq_u64 s[10:11], 0
    s_cbranch_scc1 K2_OK
    ds_write_b32 v11, v10
    """)
    a.label("K2_OK")
    stamp(a, 8)
    stamp_dump(a, 9, 26, 8, S_WAVE, 0xE00000)
    a(f"""
    s_waitcnt lgkmcnt(0)
    s_barrier
    ds_read_b32 v10, v11
    s_waitcnt lgkmcnt(0)
    v_readfirstlane_b32 s4, v10
    s_cmp_eq_u32 s4, 0
    s_cbranch_scc1 K2_END
    s_mov_b32 s{S_SAFE}, 1
    v_lshlrev_b32 v10, 4, v0
    v_mov_b32 v12, 0
    v_mov_b32 v13, 0
    v_mov_b32 v14, 0
    v_mov_b32 v15, 0
    """)
    for k in range(7):
        a(f"ds_write_b128 v10, v[12:15] offset:{8192*k}")
    a(f"""
    s_waitcnt vmcnt(0) lgkmcnt(0)
    s_barrier
    s_branch K2_RESTART
    """)
    a.label("K2_NEXTROUND")
    a(f"""
    s_waitcnt vmcnt(0) lgkmcnt(0)
    s_branch K2_ROUND
    """)
    a.label("K2_END")
    a("s_endpgm")


def main(out):
    for r in range(0, CAP + 1):
        assert (r * 43691) >> 21 == r // 48
    for d in range(N + 100):
        assert (d * 21400) >> 20 == d // NPB
    hdr = open("cdna_kernels/" + NAME + ".s.ref").read().split("; Override")[0]
    a = Asm()
    a.raw(hdr.rstrip("\n"))
    a.raw(f"; @launch kernel=k1_kernel grid=({NGEMM+NP+NPREP},1,1) block=(256,1,1) lds=5120")
    a.raw(f"; @launch kernel=k2_kernel grid=({NB},1,1) block=(512,1,1) lds={L_TOTAL}")
    a.raw('.amdgcn_target "amdgcn-amd-amdhsa--gfx950"')
    a.raw(".text")
    a.raw(".globl k1_kernel\n.type k1_kernel,@function\n.globl k2_kernel\n.type k2_kernel,@function")
    gen_k1(a)
    gen_k2(a)
    a.raw('.section .rodata,"a"')
    for name, nv, acc in (("k1_kernel", 224, 224), ("k2_kernel", 256, 192)):
        a.raw(f""".p2align 6
.amdhsa_kernel {name}
  .amdhsa_next_free_vgpr {nv}
  .amdhsa_next_free_sgpr {100 if DEBUG_STAMPS else 80}
  .amdhsa_accum_offset {acc}
  .amdhsa_group_segment_fixed_size 0
  .amdhsa_kernarg_size 88
  .amdhsa_user_sgpr_count 2
  .amdhsa_user_sgpr_kernarg_segment_ptr 1
  .amdhsa_system_sgpr_workgroup_id_x 1
.end_amdhsa_kernel""")
    open(out, "w").write(a.text())


if __name__ == "__main__":
    if len(sys.argv) > 2 and sys.argv[2] == "dbg":
        DEBUG_STAMPS = True
    for kv in sys.argv[3:]:
        k, v = kv.split("=")
        OPT[k] = int(v)
    main(sys.argv[1] if len(sys.argv) > 1 else "cdna_kernels/" + NAME + ".s")
```

```python
import sys
sys.path.insert(0, "dev")
from mb import *
from mb9 import run4
import gen as Gn
K = []
NI = {}
NT = 200
def mk(name, meta, nrec=0, filt=None, opts=None, frac=0.0, sub=None, vg=256, prio=None):
    Gn.OPT.clear(); Gn.OPT['nrec'] = nrec
    if opts: Gn.OPT.update(opts)
    a = Gn.Asm()
    Gn.gen_loop(a, False)
    lines = a.lines
    if filt: lines = [l for l in lines if not filt(l)]
    if sub: lines = [sub(l) for l in lines]
    lines = Gn.align8(lines)
    body = "\n".join(lines).replace("K2F_", name + "_").replace("K2_LOOPDONE", name + "_DONE") + f"\n{name}_DONE:\n    v_mbcnt_lo_u32_b32 v2, -1, 0\n    v_mbcnt_hi_u32_b32 v2, -1, v2\n"
    pre = "\n".join(f"    v_mul_f32 v{i}, 0.5, v3" for i in range(10, vg)) + f"""
    s_waitcnt lgkmcnt(0)
    s_mov_b32 s36, s6
    s_and_b32 s37, s7, 0xffff
    s_or_b32 s37, s37, 0x02000000
    s_mov_b32 s38, 0
    s_mov_b32 s39, 0x00020000
    s_mov_b32 s{Gn.S_META}, 0
    s_mov_b32 s{Gn.S_T}, 0
    s_mov_b32 s{Gn.S_CNT}, {NT}
    s_mov_b32 s{Gn.S_CUR}, 0
    s_mov_b32 s{Gn.S_NXT}, 0
    s_mov_b32 s{Gn.S_LIM}, {NT}
    s_setprio 1
    s_cmp_lt_u32 s20, 4
    s_cbranch_scc1 {name}_np
    s_mov_b32 s{Gn.S_LIM}, {int(NT*frac)}
    s_setprio {2 if frac > 0 else 1}
{name}_np:
    v_lshlrev_b32 v5, 4, v2
    {meta}
    v_lshlrev_b32 v4, 3, v2
    v_lshlrev_b32 v1, 2, v2
    v_and_b32 v1, 0xf0, v1
    v_mov_b32 v11, v1
    v_mov_b32 v3, 0
    v_mov_b32 v2, v1
"""
    K.append((name, body, 1, dict(pre=pre, vgpr=vg))); NI[name] = NT
M0 = "v_mov_b32 v6, 0"
M1 = """v_mul_u32_u24 v6, 3, v2
    v_add_u32 v6, s20, v6
    v_and_b32 v6, 7, v6
    v_mov_b32 v7, 0x101
    v_lshlrev_b32 v6, v6, v7
    v_and_b32 v7, 1, v2
    v_mul_u32_u24 v6, v6, v7"""
if __name__ == "__main__":
    import re
    def remap(l):
        f = lambda r: r if r < 124 else r - 68
        l = re.sub(r"v\[(\d+):(\d+)\]", lambda m: f"v[{f(int(m.group(1)))}:{f(int(m.group(1))) + int(m.group(2)) - int(m.group(1))}]", l)
        l = re.sub(r"\bv(\d+)\b", lambda m: f"v{f(int(m.group(1)))}", l)
        return l
    mk("noev", M0, sub=remap, vg=128)
    mk("ev", M1, sub=remap, vg=128)
    mk("noev_nold", M0, sub=remap, vg=128, filt=lambda l: "buffer_load" in l)
    mk("noev_nods", M0, sub=remap, vg=128, filt=lambda l: "ds_read" in l)
    mk("noev_noidxq", M0, sub=remap, vg=128, filt=lambda l: "ds_read_b32" in l or "ds_read_b64" in l)
    mk("noev_nobr", M0, sub=remap, vg=128, filt=lambda l: ("STUB" in l and "cbranch" in l) or "bitcmp" in l)
    mk("noev_none", M0, sub=remap, vg=128, filt=lambda l: "buffer_load" in l or "ds_read" in l or ("STUB" in l and "cbranch" in l) or "bitcmp" in l)
    build(K, "mb11")
    if len(sys.argv) > 1:
        run4("mb11.co", [k[0] for k in K], [(256, 256), (256, 512), (256, 768), (256, 1024)], NI, lds=131072)
```

```python
import sys
src, out, mode = sys.argv[1:4]
offa, loa, hia, offb, lob, hib, mul = [int(x, 0) for x in sys.argv[4:11]]
s = open(src).read()
if mode == "span":
    body = f"""
    s_mov_b32 s16, 0
    s_mov_b32 s20, {offa + loa*1024}
SPIN_A:
    s_load_dword s8, s[4:5], s20
    s_waitcnt lgkmcnt(0)
    s_sub_u32 s8, s12, s8
    s_max_u32 s16, s16, s8
    s_add_u32 s20, s20, 1024
    s_cmp_lt_u32 s20, {offa + hia*1024}
    s_cbranch_scc1 SPIN_A
    s_mov_b32 s17, -1
    s_mov_b32 s20, {offb + lob*1024}
SPIN_B:
    s_load_dword s8, s[4:5], s20
    s_waitcnt lgkmcnt(0)
    s_sub_u32 s8, s12, s8
    s_min_u32 s17, s17, s8
    s_add_u32 s20, s20, 1024
    s_cmp_lt_u32 s20, {offb + hib*1024}
    s_cbranch_scc1 SPIN_B
    s_sub_u32 s10, s16, s17
"""
elif mode == "gap":
    body = f"""
    s_mov_b32 s16, -1
    s_mov_b32 s20, {offa + loa*1024}
SPIN_A:
    s_load_dword s8, s[4:5], s20
    s_waitcnt lgkmcnt(0)
    s_sub_u32 s8, s12, s8
    s_min_u32 s16, s16, s8
    s_add_u32 s20, s20, 1024
    s_cmp_lt_u32 s20, {offa + hia*1024}
    s_cbranch_scc1 SPIN_A
    s_mov_b32 s17, 0
    s_mov_b32 s20, {offb + lob*1024}
SPIN_B:
    s_load_dword s8, s[4:5], s20
    s_waitcnt lgkmcnt(0)
    s_sub_u32 s8, s12, s8
    s_max_u32 s17, s17, s8
    s_add_u32 s20, s20, 1024
    s_cmp_lt_u32 s20, {offb + hib*1024}
    s_cbranch_scc1 SPIN_B
    s_sub_u32 s10, s16, s17
"""
else:
    red = "s_max_u32 s10, s10, s8" if mode == "max" else "s_add_u32 s10, s10, s8"
    fin = "" if mode == "max" else f"s_mul_i32 s10, s10, {(1<<16)//(hia-loa)}\n    s_lshr_b32 s10, s10, 16"
    body = f"""
    s_mov_b32 s10, 0
    s_mov_b32 s20, {offa + loa*1024}
    s_mov_b32 s21, {offb + loa*1024}
SPIN_A:
    s_load_dword s8, s[4:5], s20
    s_load_dword s9, s[4:5], s21
    s_waitcnt lgkmcnt(0)
    s_sub_u32 s8, s9, s8
    {red}
    s_add_u32 s20, s20, 1024
    s_add_u32 s21, s21, 1024
    s_cmp_lt_u32 s20, {offa + hia*1024}
    s_cbranch_scc1 SPIN_A
    {fin}
"""
code = f"""
.p2align 8
spin_kernel:
    s_cmp_lg_u32 s2, 0
    s_cbranch_scc1 SPIN_END
    s_memrealtime s[12:13]
    s_load_dwordx2 s[4:5], s[0:1], 80
    s_waitcnt lgkmcnt(0)
    s_add_u32 s4, s4, 0xE00000
    s_addc_u32 s5, s5, 0
{body}
    s_mul_i32 s10, s10, {mul}
    s_add_u32 s10, s10, 30000
    s_min_u32 s10, s10, 130000
SPIN_L:
    s_memrealtime s[14:15]
    s_waitcnt lgkmcnt(0)
    s_sub_u32 s11, s14, s12
    s_cmp_lt_u32 s11, s10
    s_cbranch_scc1 SPIN_L
SPIN_END:
    s_endpgm
"""
kd = """.p2align 6
.amdhsa_kernel spin_kernel
  .amdhsa_next_free_vgpr 8
  .amdhsa_next_free_sgpr 32
  .amdhsa_accum_offset 8
  .amdhsa_group_segment_fixed_size 0
  .amdhsa_kernarg_size 88
  .amdhsa_user_sgpr_count 2
  .amdhsa_user_sgpr_kernarg_segment_ptr 1
  .amdhsa_system_sgpr_workgroup_id_x 1
.end_amdhsa_kernel
"""
NM = "gather_scatter__edge_featured_mpnn_mpnn__graph_kernel"
s = s.replace("; @launch grid=", f"; @launch kernel={NM} grid=").replace(f".globl {NM}", f".globl spin_kernel\n.type spin_kernel,@function\n.globl {NM}")
s = s.replace('.section .rodata,"a"', code + '.section .rodata,"a"\n' + kd, 1).replace(".globl k1_kernel", ".globl spin_kernel\n.type spin_kernel,@function\n.globl k1_kernel")
i = s.index(".amdgcn_target")
s = s[:i] + "; @launch kernel=spin_kernel grid=(1,1,1) block=(64,1,1) lds=0\n" + s[i:]
open(out, "w").write(s)
```

```python
import sys
src, out, mode = sys.argv[1:4]
offa, loa, hia, offb, lob, hib, mul = [int(x, 0) for x in sys.argv[4:11]]
s = open(src).read()
if mode == "span":
    body = f"""
    s_mov_b32 s16, 0
    s_mov_b32 s20, {offa + loa*1024}
SPIN_A:
    s_load_dword s8, s[4:5], s20
    s_waitcnt lgkmcnt(0)
    s_sub_u32 s8, s12, s8
    s_max_u32 s16, s16, s8
    s_add_u32 s20, s20, 1024
    s_cmp_lt_u32 s20, {offa + hia*1024}
    s_cbranch_scc1 SPIN_A
    s_mov_b32 s17, -1
    s_mov_b32 s20, {offb + lob*1024}
SPIN_B:
    s_load_dword s8, s[4:5], s20
    s_waitcnt lgkmcnt(0)
    s_sub_u32 s8, s12, s8
    s_min_u32 s17, s17, s8
    s_add_u32 s20, s20, 1024
    s_cmp_lt_u32 s20, {offb + hib*1024}
    s_cbranch_scc1 SPIN_B
    s_sub_u32 s10, s16, s17
"""
elif mode in ("nowmax", "nowmin"):
    body = f"""
    s_mov_b32 s10, {0 if mode == "nowmax" else -1}
    s_mov_b32 s20, {offa + loa*1024}
SPIN_A:
    s_load_dword s8, s[4:5], s20
    s_waitcnt lgkmcnt(0)
    s_sub_u32 s8, s12, s8
    {"s_max_u32" if mode == "nowmax" else "s_min_u32"} s10, s10, s8
    s_add_u32 s20, s20, 1024
    s_cmp_lt_u32 s20, {offa + hia*1024}
    s_cbranch_scc1 SPIN_A
"""
elif mode == "gap":
    body = f"""
    s_mov_b32 s16, -1
    s_mov_b32 s20, {offa + loa*1024}
SPIN_A:
    s_load_dword s8, s[4:5], s20
    s_waitcnt lgkmcnt(0)
    s_sub_u32 s8, s12, s8
    s_min_u32 s16, s16, s8
    s_add_u32 s20, s20, 1024
    s_cmp_lt_u32 s20, {offa + hia*1024}
    s_cbranch_scc1 SPIN_A
    s_mov_b32 s17, 0
    s_mov_b32 s20, {offb + lob*1024}
SPIN_B:
    s_load_dword s8, s[4:5], s20
    s_waitcnt lgkmcnt(0)
    s_sub_u32 s8, s12, s8
    s_max_u32 s17, s17, s8
    s_add_u32 s20, s20, 1024
    s_cmp_lt_u32 s20, {offb + hib*1024}
    s_cbranch_scc1 SPIN_B
    s_sub_u32 s10, s16, s17
"""
else:
    red = "s_max_u32 s10, s10, s8" if mode == "max" else "s_add_u32 s10, s10, s8"
    fin = "" if mode == "max" else f"s_mul_i32 s10, s10, {(1<<16)//(hia-loa)}\n    s_lshr_b32 s10, s10, 16"
    body = f"""
    s_mov_b32 s10, 0
    s_mov_b32 s20, {offa + loa*1024}
    s_mov_b32 s21, {offb + loa*1024}
SPIN_A:
    s_load_dword s8, s[4:5], s20
    s_load_dword s9, s[4:5], s21
    s_waitcnt lgkmcnt(0)
    s_sub_u32 s8, s9, s8
    {red}
    s_add_u32 s20, s20, 1024
    s_add_u32 s21, s21, 1024
    s_cmp_lt_u32 s20, {offa + hia*1024}
    s_cbranch_scc1 SPIN_A
    {fin}
"""
code = f"""
.p2align 8
spin_kernel:
    s_cmp_lg_u32 s2, 0
    s_cbranch_scc1 SPIN_END
    s_memrealtime s[12:13]
    s_load_dwordx2 s[4:5], s[0:1], 80
    s_waitcnt lgkmcnt(0)
    s_add_u32 s4, s4, 0xE00000
    s_addc_u32 s5, s5, 0
{body}
    s_mul_i32 s10, s10, {mul}
    s_add_u32 s10, s10, {30000 if mul >= 0 else 60000}
    s_min_u32 s10, s10, 130000
SPIN_L:
    s_memrealtime s[14:15]
    s_waitcnt lgkmcnt(0)
    s_sub_u32 s11, s14, s12
    s_cmp_lt_u32 s11, s10
    s_cbranch_scc1 SPIN_L
SPIN_END:
    s_endpgm
"""
kd = """.p2align 6
.amdhsa_kernel spin_kernel
  .amdhsa_next_free_vgpr 8
  .amdhsa_next_free_sgpr 32
  .amdhsa_accum_offset 8
  .amdhsa_group_segment_fixed_size 0
  .amdhsa_kernarg_size 88
  .amdhsa_user_sgpr_count 2
  .amdhsa_user_sgpr_kernarg_segment_ptr 1
  .amdhsa_system_sgpr_workgroup_id_x 1
.end_amdhsa_kernel
"""
NM = "gather_scatter__edge_featured_mpnn_mpnn__graph_kernel"
s = s.replace("; @launch grid=", f"; @launch kernel={NM} grid=").replace(f".globl {NM}", f".globl spin_kernel\n.type spin_kernel,@function\n.globl {NM}")
s = s.replace('.section .rodata,"a"', code + '.section .rodata,"a"\n' + kd, 1).replace(".globl k1_kernel", ".globl spin_kernel\n.type spin_kernel,@function\n.globl k1_kernel")
i = s.index(".amdgcn_target")
s = s[:i] + "; @launch kernel=spin_kernel grid=(1,1,1) block=(64,1,1) lds=0\n" + s[i:]
open(out, "w").write(s)
```

```python
import sys
src, out, mode = sys.argv[1:4]
offa, loa, hia, offb, lob, hib, mul = [int(x, 0) for x in sys.argv[4:11]]
s = open(src).read()
if mode == "span":
    body = f"""
    s_mov_b32 s16, 0
    s_mov_b32 s20, {offa + loa*1024}
SPIN_A:
    s_load_dword s8, s[4:5], s20
    s_waitcnt lgkmcnt(0)
    s_sub_u32 s8, s12, s8
    s_max_u32 s16, s16, s8
    s_add_u32 s20, s20, 1024
    s_cmp_lt_u32 s20, {offa + hia*1024}
    s_cbranch_scc1 SPIN_A
    s_mov_b32 s17, -1
    s_mov_b32 s20, {offb + lob*1024}
SPIN_B:
    s_load_dword s8, s[4:5], s20
    s_waitcnt lgkmcnt(0)
    s_sub_u32 s8, s12, s8
    s_min_u32 s17, s17, s8
    s_add_u32 s20, s20, 1024
    s_cmp_lt_u32 s20, {offb + hib*1024}
    s_cbranch_scc1 SPIN_B
    s_sub_u32 s10, s16, s17
"""
elif mode in ("nowmax", "nowmin"):
    body = f"""
    s_mov_b32 s10, {0 if mode == "nowmax" else -1}
    s_mov_b32 s20, {offa + loa*1024}
SPIN_A:
    s_load_dword s8, s[4:5], s20
    s_waitcnt lgkmcnt(0)
    s_sub_u32 s8, s12, s8
    {"s_max_u32" if mode == "nowmax" else "s_min_u32"} s10, s10, s8
    s_add_u32 s20, s20, 1024
    s_cmp_lt_u32 s20, {offa + hia*1024}
    s_cbranch_scc1 SPIN_A
"""
elif mode == "gap":
    body = f"""
    s_mov_b32 s16, -1
    s_mov_b32 s20, {offa + loa*1024}
SPIN_A:
    s_load_dword s8, s[4:5], s20
    s_waitcnt lgkmcnt(0)
    s_sub_u32 s8, s12, s8
    s_min_u32 s16, s16, s8
    s_add_u32 s20, s20, 1024
    s_cmp_lt_u32 s20, {offa + hia*1024}
    s_cbranch_scc1 SPIN_A
    s_mov_b32 s17, 0
    s_mov_b32 s20, {offb + lob*1024}
SPIN_B:
    s_load_dword s8, s[4:5], s20
    s_waitcnt lgkmcnt(0)
    s_sub_u32 s8, s12, s8
    s_max_u32 s17, s17, s8
    s_add_u32 s20, s20, 1024
    s_cmp_lt_u32 s20, {offb + hib*1024}
    s_cbranch_scc1 SPIN_B
    s_sub_u32 s10, s16, s17
"""
else:
    red = "s_max_u32 s10, s10, s8" if mode == "max" else "s_add_u32 s10, s10, s8"
    fin = "" if mode == "max" else f"s_mul_i32 s10, s10, {(1<<16)//(hia-loa)}\n    s_lshr_b32 s10, s10, 16"
    body = f"""
    s_mov_b32 s10, 0
    s_mov_b32 s20, {offa + loa*1024}
    s_mov_b32 s21, {offb + loa*1024}
SPIN_A:
    s_load_dword s8, s[4:5], s20
    s_load_dword s9, s[4:5], s21
    s_waitcnt lgkmcnt(0)
    s_sub_u32 s8, s9, s8
    {red}
    s_add_u32 s20, s20, 1024
    s_add_u32 s21, s21, 1024
    s_cmp_lt_u32 s20, {offa + hia*1024}
    s_cbranch_scc1 SPIN_A
    {fin}
"""
code = f"""
.p2align 8
spin_kernel:
    s_cmp_lg_u32 s2, 0
    s_cbranch_scc1 SPIN_END
    s_memrealtime s[12:13]
    s_load_dwordx2 s[4:5], s[0:1], 80
    s_waitcnt lgkmcnt(0)
    s_add_u32 s4, s4, 0xE00000
    s_addc_u32 s5, s5, 0
    s_mov_b32 s20, {0x100000 + 200*1024 + 11*64}
    s_mov_b32 s21, {0x100000 + 200*1024 + 11*64 + 20}
    s_load_dword s8, s[4:5], s20
    s_load_dword s9, s[4:5], s21
    s_waitcnt lgkmcnt(0)
    s_sub_u32 s8, s9, s8
    s_cmp_ge_u32 s8, 13000
    s_cbranch_scc1 SPIN_END
{body}
    s_mul_i32 s10, s10, {mul}
    s_add_u32 s10, s10, {30000 if mul >= 0 else 60000}
    s_min_u32 s10, s10, 130000
SPIN_L:
    s_memrealtime s[14:15]
    s_waitcnt lgkmcnt(0)
    s_sub_u32 s11, s14, s12
    s_cmp_lt_u32 s11, s10
    s_cbranch_scc1 SPIN_L
SPIN_END:
    s_endpgm
"""
kd = """.p2align 6
.amdhsa_kernel spin_kernel
  .amdhsa_next_free_vgpr 8
  .amdhsa_next_free_sgpr 32
  .amdhsa_accum_offset 8
  .amdhsa_group_segment_fixed_size 0
  .amdhsa_kernarg_size 88
  .amdhsa_user_sgpr_count 2
  .amdhsa_user_sgpr_kernarg_segment_ptr 1
  .amdhsa_system_sgpr_workgroup_id_x 1
.end_amdhsa_kernel
"""
NM = "gather_scatter__edge_featured_mpnn_mpnn__graph_kernel"
s = s.replace("; @launch grid=", f"; @launch kernel={NM} grid=").replace(f".globl {NM}", f".globl spin_kernel\n.type spin_kernel,@function\n.globl {NM}")
s = s.replace('.section .rodata,"a"', code + '.section .rodata,"a"\n' + kd, 1).replace(".globl k1_kernel", ".globl spin_kernel\n.type spin_kernel,@function\n.globl k1_kernel")
i = s.index(".amdgcn_target")
s = s[:i] + "; @launch kernel=spin_kernel grid=(1,1,1) block=(64,1,1) lds=0\n" + s[i:]
open(out, "w").write(s)
```
